```python
import torch

def _softmax(x, axis=-1):
    return torch.softmax(x, dim=axis)
def _gelu(x):
    return torch.nn.functional.gelu(x, approximate="tanh")
def _silu(x):
    return torch.nn.functional.silu(x)
def _sigmoid(x):
    return torch.sigmoid(x)
def _layernorm(x, axis=-1, eps=1e-5):
    m = x.mean(dim=axis, keepdim=True)
    v = x.var(dim=axis, keepdim=True, unbiased=False)
    return (x - m) / torch.sqrt(v + eps)
def _scatter_add(tgt, idx, src, axis=0):
    return tgt.clone().index_add_(axis, idx, src)
def _segment_sum(src, seg, n):
    out = torch.zeros((n,) + src.shape[1:], dtype=src.dtype)
    return out.index_add_(0, seg, src)
def _pad(x, pw):
    flat = tuple(v for pair in reversed(pw) for v in pair)
    return torch.nn.functional.pad(x, flat)

kernel_name = 'standalone__self_sup_conv_stem_hubert__speech'

def setup_inputs():

    _w = (lambda a: (lambda t: t.to(torch.bfloat16) if t.is_floating_point() else t)(torch.as_tensor(a)))
    B, T, D, K = 2, 4000, 512, 5
    scale = (1.0 / (K * D)) ** 0.5
    return {
        "x": _w((lambda *s: torch.randn(*s, dtype=torch.bfloat16) * 0.05)(B, T, D)),
        "w": _w((lambda *s: torch.randn(*s, dtype=torch.bfloat16) * 0.05)(K, D, D) * scale),
        "b": _w((lambda *s: torch.randn(*s, dtype=torch.bfloat16) * 0.05)(D) * 0.1),
        "gamma": _w(torch.ones((D,), dtype=float)),
        "beta": _w(torch.zeros((D,), dtype=float)),
    }

def reference(x, w, b, gamma, beta):
    B, T, D = x.shape
    K = w.shape[0]
    s = 2
    L = (T - K) // s + 1
    y = torch.einsum('blc,cd->bld', x[:, 0 : s * L : s, :], w[0])
    for i in range(1, K):
        y = y + torch.einsum('blc,cd->bld', x[:, i : i + s * L : s, :], w[i])
    y = y + b[None, None, :]
    mu = y.mean(1, keepdims=True)
    var = ((y - mu) ** 2).mean(1, keepdims=True)
    yn = (y - mu) / torch.sqrt(var + 1e-5)
    yn = yn * gamma[None, None, :] + beta[None, None, :]
    return _gelu(yn)
```

```python
NAME = "standalone__self_sup_conv_stem_hubert__speech_kernel"

HEADER_COMMENT = """; Kernarg layout for this problem (64 bytes, ptrs only, base s[0:1]):
"""

class Asm:
    def __init__(self):
        self.lines = []
    def __call__(self, s):
        for l in s.split("\n"):
            self.lines.append(l if l.rstrip().endswith(":") else "    " + l.strip())
    def label(self, s):
        self.lines.append(s + ":")
    def text(self):
        return "\n".join(self.lines) + "\n"

def wrap(body, grid, block, lds, vgpr, agpr=0, sgpr=102, name=NAME, extra_desc=""):
    acc = (vgpr + 3) // 4 * 4
    nfv = acc + agpr if agpr else vgpr
    return (HEADER_COMMENT +
        f"; @launch grid=({grid},1,1) block=({block},1,1) lds={lds}\n"
        f'.amdgcn_target "amdgcn-amd-amdhsa--gfx950"\n.text\n.globl {name}\n.p2align 8\n.type {name},@function\n{name}:\n'
        + body +
        f'.section .rodata,"a"\n.p2align 6\n.amdhsa_kernel {name}\n'
        f"  .amdhsa_next_free_vgpr {nfv}\n  .amdhsa_next_free_sgpr {sgpr}\n  .amdhsa_accum_offset {acc}\n"
        "  .amdhsa_group_segment_fixed_size 0\n  .amdhsa_kernarg_size 64\n  .amdhsa_user_sgpr_count 2\n"
        "  .amdhsa_user_sgpr_kernarg_segment_ptr 1\n  .amdhsa_system_sgpr_workgroup_id_x 1\n"
        + extra_desc +
        ".end_amdhsa_kernel\n")
```

```python
import sys, math
from asmlib import *

def f32bits(x):
    import struct
    return struct.unpack("<I", struct.pack("<f", x))[0]

def gen(out, mapping=0, stamps=False, prefetch=0):
    a = Asm()
    SLOT = [0, 40960, 73728, 114688]
    SCR = 147456
    LDS = 147456 + 4096
    sX, sW, sO, sS = 8, 12, 16, 20
    sMT, sNT, sWave, sXb, sWb, sM0x, sM0w = 24, 25, 26, 27, 28, 29, 30
    sT0, sT1, sT2, sT3 = 31, 32, 33, 34
    sGrp, sTile = 35, 36
    sD = 40
    sG = 44
    sB = 48
    sSt = 60
    nst = [0]
    def stamp():
        if stamps:
            r = sSt + 4 * nst[0]; nst[0] += 1
            a(f"s_memrealtime s[{r}:{r+1}]\ns_memtime s[{r+2}:{r+3}]")
    vL = 1
    vX = [2, 3, 4, 5]; vW = [6, 7]
    vA = [8, 9, 10, 11]; vA2 = [12, 13, 14, 15]
    vB = [16, 17, 18, 19]
    vGam, vBet, vCnt = 20, 21, 22
    vT = list(range(24, 40))
    AB = 40
    FA = 76
    FB = 92
    vP = 116
    NV = 132

    a("s_cmp_ge_u32 s2, 256\ns_cbranch_scc1 L_end")
    stamp()
    a("s_load_dwordx4 s[4:7], s[0:1], 0")
    a("s_load_dwordx4 s[52:55], s[0:1], 24")
    a("s_load_dwordx4 s[56:59], s[0:1], 40")
    a(f"s_load_dwordx2 s[{sS}:{sS+1}], s[0:1], 56")
    a(f"s_and_b32 s{sT0}, s2, 7\ns_lshr_b32 s{sT1}, s2, 3")
    if mapping == 0:
        a(f"s_and_b32 s{sMT}, s{sT1}, 3\ns_lshl_b32 s{sT2}, s{sT0}, 2\ns_add_u32 s{sMT}, s{sMT}, s{sT2}\ns_lshr_b32 s{sNT}, s{sT1}, 2")
    elif mapping == 1:
        a(f"s_and_b32 s{sMT}, s{sT1}, 7\ns_lshr_b32 s{sT2}, s{sT0}, 1\ns_lshl_b32 s{sT2}, s{sT2}, 3\ns_add_u32 s{sMT}, s{sMT}, s{sT2}")
        a(f"s_lshr_b32 s{sNT}, s{sT1}, 3\ns_and_b32 s{sT2}, s{sT0}, 1\ns_lshl_b32 s{sT2}, s{sT2}, 2\ns_add_u32 s{sNT}, s{sNT}, s{sT2}")
    elif mapping == 3:
        a(f"s_and_b32 s{sMT}, s{sT1}, 15\ns_lshr_b32 s{sT2}, s{sT0}, 2\ns_lshl_b32 s{sT2}, s{sT2}, 4\ns_add_u32 s{sMT}, s{sMT}, s{sT2}")
        a(f"s_lshr_b32 s{sNT}, s{sT1}, 4\ns_and_b32 s{sT2}, s{sT0}, 3\ns_lshl_b32 s{sT2}, s{sT2}, 1\ns_add_u32 s{sNT}, s{sNT}, s{sT2}")
    a(f"v_lshrrev_b32 v{vT[0]}, 6, v0\nv_and_b32 v{vL}, 63, v0\nv_readfirstlane_b32 s{sWave}, v{vT[0]}")
    a(f"s_and_b32 s{sTile}, s{sMT}, 15\ns_lshr_b32 s{sT0}, s{sMT}, 4")
    a(f"s_lshl_b32 s{sGrp}, s{sT0}, 3\ns_add_u32 s{sGrp}, s{sGrp}, s{sNT}")
    a(f"s_mul_i32 s{sXb}, s{sT0}, 4000\ns_mul_i32 s{sT1}, s{sTile}, 252\ns_add_u32 s{sXb}, s{sXb}, s{sT1}")
    a(f"s_lshr_b32 s{sT1}, s{sWave}, 1\ns_lshl_b32 s{sT1}, s{sT1}, 7\ns_add_u32 s{sXb}, s{sXb}, s{sT1}")
    a(f"s_and_b32 s{sT1}, s{sWave}, 1\ns_lshl_b32 s{sT1}, s{sT1}, 4\ns_add_u32 s{sXb}, s{sXb}, s{sT1}\ns_lshl_b32 s{sXb}, s{sXb}, 10")
    a(f"s_lshl_b32 s{sWb}, s{sWave}, 14\ns_lshl_b32 s{sT1}, s{sNT}, 7\ns_add_u32 s{sWb}, s{sWb}, s{sT1}")
    a(f"s_lshl_b32 s{sM0x}, s{sWave}, 12\ns_lshl_b32 s{sM0w}, s{sWave}, 11\ns_add_u32 s{sM0w}, s{sM0w}, 16384")
    a(f"s_mul_i32 s{sT2}, s{sT0}, 1998\ns_mul_i32 s{sT1}, s{sTile}, 126\ns_add_u32 s{sT2}, s{sT2}, s{sT1}\ns_lshl_b32 s{sT2}, s{sT2}, 10")
    t = vT
    a(f"v_lshrrev_b32 v{t[0]}, 5, v{vL}\nv_lshlrev_b32 v{t[0]}, 5, v{t[0]}")
    a(f"v_bfe_u32 v{t[1]}, v{vL}, 3, 1\nv_lshl_add_u32 v{t[0]}, v{t[1]}, 4, v{t[0]}")
    a(f"v_bfe_u32 v{t[1]}, v{vL}, 4, 1\nv_add_u32 v{t[0]}, v{t[0]}, v{t[1]}")
    a(f"v_lshlrev_b32 v{t[0]}, 11, v{t[0]}")
    a(f"v_and_b32 v{t[1]}, 7, v{vL}\nv_lshrrev_b32 v{t[2]}, 4, v{vL}\nv_xor_b32 v{t[2]}, v{t[1]}, v{t[2]}")
    a(f"v_lshl_add_u32 v{vX[0]}, v{t[2]}, 4, v{t[0]}")
    a(f"v_xor_b32 v{t[3]}, 64, v{vX[0]}")
    a(f"v_add_u32 v{vX[1]}, {4096-1024}, v{t[3]}\nv_add_u32 v{vX[2]}, {2*3072}, v{vX[0]}\nv_add_u32 v{vX[3]}, {3*3072}, v{t[3]}")
    a(f"v_lshrrev_b32 v{t[0]}, 3, v{vL}\nv_lshlrev_b32 v{t[0]}, 10, v{t[0]}")
    a(f"v_bfe_u32 v{t[2]}, v{vL}, 4, 1\nv_lshlrev_b32 v{t[2]}, 2, v{t[2]}\nv_xor_b32 v{t[2]}, v{t[1]}, v{t[2]}")
    a(f"v_lshl_add_u32 v{vW[0]}, v{t[2]}, 4, v{t[0]}\nv_add_u32 v{vW[1]}, {8192-1024}, v{vW[0]}")
    a("s_waitcnt lgkmcnt(0)")
    a(f"s_mov_b32 s{sX}, s4\ns_mov_b32 s{sX+1}, s5\ns_mov_b32 s{sX+2}, 8192000\ns_mov_b32 s{sX+3}, 0x20000")
    a(f"s_mov_b32 s{sW}, s6\ns_mov_b32 s{sW+1}, s7\ns_mov_b32 s{sW+2}, 2621440\ns_mov_b32 s{sW+3}, 0x20000")

    def dma_ops(item):
        chunk, p = item >> 1, item & 1
        slot = SLOT[item & 3]
        ops = []
        taps = [0, 2, 4] if p == 0 else [1, 3]
        first = f"s_add_u32 s{sT0}, s{sXb}, {p*1024 + chunk*128}\ns_add_u32 m0, s{sM0x}, {slot}\ns_nop 0\n"
        for u in range(4):
            ops.append((first if u == 0 else "") + f"buffer_load_dwordx4 v{vX[u]}, s[{sX}:{sX+3}], s{sT0} offen offset:{u*1024} lds")
        for ti, tap in enumerate(taps):
            first = f"s_add_u32 s{sT1}, s{sWb}, {tap*524288 + chunk*65536}\ns_add_u32 m0, s{sM0w}, {slot + ti*8192}\ns_nop 0\n"
            for u in range(2):
                ops.append((first if u == 0 else "") + f"buffer_load_dwordx4 v{vW[u]}, s[{sW}:{sW+3}], s{sT1} offen offset:{u*1024} lds")
        return ops
    for o in dma_ops(0): a(o)
    a(f"s_add_u32 s{sO}, s56, s{sT2}\ns_addc_u32 s{sO+1}, s57, 0\ns_mov_b32 s{sO+2}, {126*1024}\ns_cmp_eq_u32 s{sTile}, 15\ns_cmov_b32 s{sO+2}, {108*1024}\ns_mov_b32 s{sO+3}, 0x20000")
    a(f"s_mov_b32 s{sS+2}, {16*2*16*256}\ns_mov_b32 s{sS+3}, 0x20000")
    a(f"s_mov_b32 s{sD}, s58\ns_mov_b32 s{sD+1}, s59\ns_mov_b32 s{sD+2}, 256\ns_mov_b32 s{sD+3}, 0x20000")
    a(f"s_mov_b32 s{sG}, s52\ns_mov_b32 s{sG+1}, s53\ns_mov_b32 s{sG+2}, 1024\ns_mov_b32 s{sG+3}, 0x20000")
    a(f"s_mov_b32 s{sB}, s54\ns_mov_b32 s{sB+1}, s55\ns_mov_b32 s{sB+2}, 1024\ns_mov_b32 s{sB+3}, 0x20000")
    a(f"s_and_b32 s{sT1}, s{sWave}, 1\ns_lshl_b32 s{sT3}, s{sGrp}, 1\ns_add_u32 s{sT3}, s{sT3}, s{sT1}\ns_lshl_b32 s{sT3}, s{sT3}, 12")
    a(f"s_lshl_b32 s37, s{sTile}, 8\ns_add_u32 s37, s37, s{sT3}")
    a(f"v_lshlrev_b32 v{t[0]}, 2, v{vL}\nv_mov_b32 v{t[1]}, -1")
    a(f"buffer_store_dword v{t[1]}, v{t[0]}, s[{sS}:{sS+3}], s37 offen sc1")
    a(f"s_lshl_b32 s{sT0}, s{sNT}, 7\ns_lshl_b32 s{sT1}, s{sT1}, 6\ns_add_u32 s38, s{sT0}, s{sT1}")
    a(f"v_and_b32 v{t[2]}, 31, v{vL}\nv_lshlrev_b32 v{t[3]}, 1, v{t[2]}")
    a(f"buffer_load_ushort v{vGam}, v{t[3]}, s[{sG}:{sG+3}], s38 offen\nbuffer_load_ushort v{vBet}, v{t[3]}, s[{sB}:{sB+3}], s38 offen")
    for it in (1, 2, 3):
        for o in dma_ops(it): a(o)
    a(f"s_lshr_b32 s{sT0}, s{sWave}, 1\ns_lshl_b32 s{sT0}, s{sT0}, 13")
    a(f"v_lshlrev_b32 v{t[0]}, 7, v{t[2]}\nv_add_u32 v{t[0]}, s{sT0}, v{t[0]}")
    a(f"v_bfe_u32 v{t[1]}, v{vL}, 1, 3\nv_lshrrev_b32 v{t[3]}, 5, v{vL}\nv_xor_b32 v{t[1]}, v{t[1]}, v{t[3]}")
    for ks in range(4):
        a(f"v_xor_b32 v{t[4]}, {2*ks}, v{t[1]}\nv_lshl_add_u32 v{vA[ks]}, v{t[4]}, 4, v{t[0]}\nv_add_u32 v{vA2[ks]}, {SLOT[2]}, v{vA[ks]}")
    a(f"v_bfe_u32 v{t[4]}, v{vL}, 2, 2\nv_lshl_add_u32 v{t[5]}, v{t[3]}, 3, v{t[4]}\nv_lshlrev_b32 v{t[5]}, 7, v{t[5]}")
    a(f"v_bfe_u32 v{t[6]}, v{vL}, 4, 1\nv_bfe_u32 v{t[7]}, v{vL}, 1, 1\nv_lshl_add_u32 v{t[6]}, v{t[6]}, 1, v{t[7]}")
    a(f"v_bfe_u32 v{t[7]}, v{vL}, 3, 1\ns_and_b32 s{sT1}, s{sWave}, 1\nv_xor_b32 v{t[7]}, s{sT1}, v{t[7]}")
    a(f"v_lshl_add_u32 v{t[6]}, v{t[7]}, 2, v{t[6]}\nv_lshl_add_u32 v{t[5]}, v{t[6]}, 4, v{t[5]}")
    a(f"v_and_b32 v{t[7]}, 1, v{vL}\nv_lshl_add_u32 v{t[5]}, v{t[7]}, 3, v{t[5]}")
    for s in range(4):
        a(f"v_add_u32 v{vB[s]}, {SLOT[s] + 16384}, v{t[5]}")
    for k in range(36):
        a(f"v_mov_b32 v{AB+k}, 0")

    def reads(item, ks, buf):
        p = item & 1; s = item & 3
        ntap = 3 if p == 0 else 2
        ops = []
        base = vA[ks] if s < 2 else vA2[ks]
        off = SLOT[s] if s < 2 else SLOT[s] - SLOT[2]
        def rb(ti):
            r = FB + buf*12 + ti*4
            return [f"ds_read_b64_tr_b16 v[{r+2*q}:{r+2*q+1}], v{vB[s]} offset:{ti*8192 + (16*ks + 4*q)*128}" for q in range(2)]
        def ra(blk):
            r = FA + buf*8 + blk*4
            return [f"ds_read_b128 v[{r}:{r+3}], v{base} offset:{off + blk*4096}"]
        if ks & 1:
            ops += ra(1) + rb(ntap - 1) + ra(0)
            for ti in range(ntap - 2, -1, -1): ops += rb(ti)
        else:
            ops += ra(0) + rb(0) + ra(1)
            for ti in range(1, ntap): ops += rb(ti)
        return ops
    def mfmas(item, ks, buf):
        p = item & 1
        ntap = 3 if p == 0 else 2
        ops = []
        desc = ks & 1
        for ti in (range(ntap)[::-1] if desc else range(ntap)):
            for blk in ((1, 0) if desc else (0, 1)):
                d = AB + 4 + 16*blk - 2*ti
                ra = FA + buf*8 + blk*4; rb = FB + buf*12 + ti*4
                ops.append(f"v_mfma_f32_32x32x16_bf16 v[{d}:{d+15}], v[{ra}:{ra+3}], v[{rb}:{rb+3}], v[{d}:{d+15}]")
        return ops

    NIT = 16
    ndma = lambda it: (10 if it % 2 == 0 else 8) if it < NIT else 0
    a(f"s_waitcnt vmcnt({ndma(1)+ndma(2)+ndma(3)})\ns_barrier")
    stamp()
    if stamps: a("s_waitcnt lgkmcnt(0)")
    a(f"s_cmp_lg_u32 s{sWave}, 0\ns_cbranch_scc1 L_noatom")
    a(f"s_mov_b64 exec, 1\nv_mov_b32 v{t[0]}, 1\ns_lshl_b32 s{sT0}, s{sGrp}, 4\nv_mov_b32 v{t[1]}, s{sT0}")
    a(f"buffer_atomic_add v{t[0]}, v{t[1]}, s[{sD}:{sD+3}], 0 offen sc1\ns_mov_b64 exec, -1")
    a.label("L_noatom")
    for o in reads(0, 0, 0): a(o)
    step = 0
    pend_dma = []
    for item in range(NIT):
        for ks in range(4):
            buf = step & 1
            m = mfmas(item, ks, buf)
            last = (ks == 3)
            a("s_waitcnt lgkmcnt(0)")
            fill = []
            if not last:
                fill = reads(item, ks + 1, buf ^ 1)
            else:
                a(m.pop(0))
                if item + 1 < NIT:
                    assert not pend_dma
                    a(f"s_waitcnt vmcnt({ndma(item+2)+ndma(item+3)})\ns_barrier")
                    fill = reads(item + 1, 0, buf ^ 1)
                    if item + 4 < NIT: pend_dma = dma_ops(item + 4)
                    if item + 1 == NIT - 3:
                        pend_dma = [f"s_lshl_b32 s{sT0}, s{sGrp}, 4\nv_mov_b32 v{vCnt}, s{sT0}\nbuffer_load_dword v{vCnt}, v{vCnt}, s[{sD}:{sD+3}], 0 offen sc1"]
            nm = len(m)
            for i, mm in enumerate(m):
                k = -(-len(fill) // max(nm - 1 - i, 1))
                k = min(max(k, 2), len(fill))
                for _ in range(k): a(fill.pop(0))
                a(mm)
                if pend_dma: a(pend_dma.pop(0))
            assert not fill
            step += 1
    assert not pend_dma
    acc = lambda k: AB + k
    a("s_nop 15")
    stamp()
    z0, z1, s1, s2, q1, q2, i0, i1, adr = t[0], t[1], t[2], t[3], t[4], t[5], t[6], t[7], t[8]
    a(f"v_mov_b32 v{z0}, 0\nv_mov_b32 v{z1}, 0")
    a(f"v_add_f32 v{acc(32)}, v{acc(32)}, v{acc(1)}\nv_add_f32 v{acc(34)}, v{acc(34)}, v{acc(3)}")
    a(f"v_permlane32_swap_b32 v{acc(0)}, v{z0}\nv_permlane32_swap_b32 v{acc(2)}, v{z1}")
    a(f"s_and_b32 s{sT1}, s{sWave}, 1\ns_lshl_b32 s{sT1}, s{sT1}, 11\ns_add_u32 s{sT1}, s{sT1}, {SCR}")
    a(f"v_add_f32 v{acc(33)}, v{acc(33)}, v{z0}\nv_add_f32 v{acc(35)}, v{acc(35)}, v{z1}")
    a(f"v_lshl_add_u32 v{adr}, v{vL}, 3, s{sT1}")
    def stats():
        a(f"v_pk_mul_f32 v[{q1}:{q1+1}], v[{acc(4)}:{acc(5)}], v[{acc(4)}:{acc(5)}]")
        a(f"v_pk_add_f32 v[{s1}:{s1+1}], v[{acc(4)}:{acc(5)}], v[{acc(6)}:{acc(7)}]")
        a(f"v_pk_fma_f32 v[{q1}:{q1+1}], v[{acc(6)}:{acc(7)}], v[{acc(6)}:{acc(7)}], v[{q1}:{q1+1}]")
        for k in range(8, 36, 2):
            a(f"v_pk_add_f32 v[{s1}:{s1+1}], v[{s1}:{s1+1}], v[{acc(k)}:{acc(k+1)}]")
            a(f"v_pk_fma_f32 v[{q1}:{q1+1}], v[{acc(k)}:{acc(k+1)}], v[{acc(k)}:{acc(k+1)}], v[{q1}:{q1+1}]")
        a(f"v_add_f32 v{s1}, v{s1}, v{s2}\nv_add_f32 v{s2}, v{q1}, v{q2}")
    assert s1 % 2 == 0 and q1 % 2 == 0 and i0 % 2 == 0
    a(f"s_cmp_ge_u32 s{sWave}, 2\ns_cbranch_scc1 L_mh1")
    a(f"s_mov_b32 exec_lo, 0")
    a(f"v_mov_b32 v{i0}, v{acc(33)}\nv_mov_b32 v{i1}, v{acc(35)}")
    a(f"ds_write_b64 v{adr}, v[{i0}:{i1}] offset:512")
    a(f"v_mov_b32 v{acc(33)}, 0\nv_mov_b32 v{acc(35)}, 0")
    a(f"s_mov_b32 exec_lo, -1")
    stats()
    a(f"ds_write_b64 v{adr}, v[{s1}:{s2}]")
    a("s_waitcnt lgkmcnt(0)\ns_barrier")
    a(f"s_mov_b32 exec_lo, 0")
    a(f"ds_read_b64 v[{q1}:{q2}], v{adr} offset:256")
    a(f"s_waitcnt lgkmcnt(0)\nv_add_f32 v{acc(33)}, v{i0}, v{q1}\nv_add_f32 v{acc(35)}, v{i1}, v{q2}")
    a(f"s_mov_b32 exec_lo, -1")
    a("s_branch L_poll")
    a.label("L_mh1")
    a(f"s_mov_b32 exec_hi, 0")
    a(f"v_mov_b32 v{acc(1)}, v{acc(2)}")
    a(f"ds_write_b64 v{adr}, v[{acc(0)}:{acc(1)}] offset:512")
    a(f"s_mov_b32 exec_hi, -1\ns_mov_b32 exec_lo, 0")
    a(f"v_mov_b32 v{acc(33)}, 0\nv_mov_b32 v{acc(35)}, 0")
    a(f"s_cmp_lg_u32 s{sTile}, 15\ns_cbranch_scc1 L_nz")
    for S in range(16):
        if S < 14: a(f"v_mov_b32 v{acc(4+2*S+1)}, 0")
        if S >= 12: a(f"v_mov_b32 v{acc(4+2*S)}, 0")
    a.label("L_nz")
    a(f"s_mov_b32 exec_lo, -1")
    stats()
    a("s_waitcnt lgkmcnt(0)\ns_barrier")
    a(f"ds_read_b64 v[{q1}:{q2}], v{adr}")
    a(f"s_mov_b32 exec_hi, 0")
    a(f"ds_read_b64 v[{i0}:{i1}], v{adr} offset:768")
    a(f"s_waitcnt lgkmcnt(0)\nv_add_f32 v{i0}, v{i0}, v{acc(0)}\nv_add_f32 v{i1}, v{i1}, v{acc(1)}")
    a(f"v_add_f32 v{s1}, v{s1}, v{i0}\nv_fmac_f32 v{s2}, v{i0}, v{i0}\nv_add_f32 v{s1}, v{s1}, v{i1}\nv_fmac_f32 v{s2}, v{i1}, v{i1}")
    a(f"s_mov_b32 exec_hi, -1")
    a(f"v_add_f32 v{s1}, v{s1}, v{q1}\nv_add_f32 v{s2}, v{s2}, v{q2}")
    a(f"s_nop 1\nv_permlane32_swap_b32 v{s1}, v{q1}\nv_permlane32_swap_b32 v{s2}, v{q2}")
    a(f"v_and_b32 v{adr}, 15, v{vL}\nv_lshlrev_b32 v{adr}, 4, v{adr}\nv_bfe_u32 v{z0}, v{vL}, 4, 1\nv_lshl_add_u32 v{adr}, v{z0}, 3, v{adr}")
    a(f"v_add_f32 v{s1}, v{s1}, v{q1}\nv_add_f32 v{s2}, v{s2}, v{q2}\nv_and_b32 v{s2}, 0x7fffffff, v{s2}")
    a(f"s_mov_b32 exec_hi, 0")
    a(f"buffer_store_dwordx2 v[{s1}:{s2}], v{adr}, s[{sS}:{sS+3}], s37 offen sc1")
    a(f"s_mov_b32 exec_hi, -1")
    a.label("L_poll")
    stamp()
    a(f"v_lshlrev_b32 v{adr}, 4, v{vL}")
    a(f"s_lshl_b32 s{sT0}, s{sGrp}, 4\nv_mov_b32 v{z1}, s{sT0}")
    a("s_mov_b32 s39, 0x40000")
    a.label("L_cnt")
    a(f"v_cmp_ne_u32 vcc, 16, v{vCnt}\ns_cbranch_vccz L_p2")
    a("s_sub_u32 s39, s39, 1\ns_cbranch_scc1 L_p3")
    a(f"buffer_load_dword v{vCnt}, v{z1}, s[{sD}:{sD+3}], 0 offen sc1\ns_waitcnt vmcnt(0)\ns_branch L_cnt")
    a.label("L_p2")
    for i in range(4):
        a(f"buffer_load_dwordx4 v[{vP+4*i}:{vP+4*i+3}], v{adr}, s[{sS}:{sS+3}], s{sT3} offen offset:{1024*i} sc1")
    a("s_waitcnt vmcnt(0)")
    a(f"v_max3_u32 v{z0}, v{vP+1}, v{vP+3}, v{vP+5}\nv_max3_u32 v{z0}, v{z0}, v{vP+7}, v{vP+9}\nv_max3_u32 v{z0}, v{z0}, v{vP+11}, v{vP+13}\nv_max_u32 v{z0}, v{z0}, v{vP+15}")
    a(f"v_cmp_eq_u32 vcc, -1, v{z0}\ns_cbranch_vccz L_p3")
    a("s_sub_u32 s39, s39, 1\ns_cbranch_scc0 L_p2")
    a.label("L_p3")
    stamp()
    for i in (1, 2, 3):
        a(f"v_pk_add_f32 v[{vP}:{vP+1}], v[{vP}:{vP+1}], v[{vP+4*i}:{vP+4*i+1}]\nv_pk_add_f32 v[{vP+2}:{vP+3}], v[{vP+2}:{vP+3}], v[{vP+4*i+2}:{vP+4*i+3}]")
    a(f"s_nop 1\nv_permlane16_swap_b32 v{vP}, v{vP+2}\nv_permlane16_swap_b32 v{vP+1}, v{vP+3}")
    a(f"s_nop 0\nv_pk_add_f32 v[{vP}:{vP+1}], v[{vP}:{vP+1}], v[{vP+2}:{vP+3}]")
    a(f"v_mov_b32 v{vP+2}, v{vP}\nv_mov_b32 v{vP+3}, v{vP+1}")
    a(f"s_nop 1\nv_permlane32_swap_b32 v{vP}, v{vP+2}\nv_permlane32_swap_b32 v{vP+1}, v{vP+3}")
    a(f"s_nop 0\nv_pk_add_f32 v[{vP}:{vP+1}], v[{vP}:{vP+1}], v[{vP+2}:{vP+3}]")
    mean, var, sc, sh = vP+4, vP+5, vP+6, vP+8
    a(f"v_mul_f32 v{mean}, {hex(f32bits(1.0/1998))}, v{vP}\nv_mul_f32 v{var}, {hex(f32bits(1.0/1998))}, v{vP+1}")
    a(f"v_fma_f32 v{var}, -v{mean}, v{mean}, v{var}\nv_max_f32 v{var}, 0, v{var}\nv_add_f32 v{var}, {hex(f32bits(1e-5))}, v{var}")
    a(f"v_rsq_f32 v{var}, v{var}\nv_lshlrev_b32 v{vGam}, 16, v{vGam}\nv_lshlrev_b32 v{vBet}, 16, v{vBet}")
    a(f"v_mul_f32 v{sc}, v{var}, v{vGam}\nv_fma_f32 v{sh}, -v{mean}, v{sc}, v{vBet}")
    a(f"v_mov_b32 v{sc+1}, v{sc}\nv_mov_b32 v{sh+1}, v{sh}")
    c1 = -2.0 * math.sqrt(2.0 / math.pi) * math.log2(math.e); c2 = c1 * 0.044715
    k1, k2, one, sel = vP+10, vP+12, vP+14, vP
    a(f"v_mov_b32 v{k1}, {hex(f32bits(c1))}\nv_mov_b32 v{k1+1}, {hex(f32bits(c1))}\nv_mov_b32 v{k2}, {hex(f32bits(c2))}\nv_mov_b32 v{k2+1}, {hex(f32bits(c2))}")
    a(f"v_mov_b32 v{one}, 1.0\nv_mov_b32 v{one+1}, 1.0")
    a(f"v_and_b32 v{z0}, 1, v{vL}\nv_cmp_eq_u32 vcc, 1, v{z0}\nv_mov_b32 v{sel}, 0x05040100\nv_mov_b32 v{z1}, 0x03020706\ns_nop 0\nv_cndmask_b32 v{sel}, v{sel}, v{z1}, vcc")
    a(f"v_lshrrev_b32 v{z1}, 5, v{vL}\nv_lshl_add_u32 v{z0}, v{z1}, 1, v{z0}\nv_lshlrev_b32 v{adr}, 14, v{z0}")
    a(f"v_and_b32 v{z0}, 30, v{vL}\nv_lshl_add_u32 v{adr}, v{z0}, 1, v{adr}")
    a(f"s_lshr_b32 s{sT0}, s{sWave}, 1\ns_lshl_b32 s{sT0}, s{sT0}, 16\ns_add_u32 s{sT0}, s{sT0}, s38")
    T = FA
    for S in range(16):
        y = acc(4 + 2*S); u = T + (S & 3) * 4; e = u + 2
        a(f"v_pk_fma_f32 v[{y}:{y+1}], v[{y}:{y+1}], v[{sc}:{sc+1}], v[{sh}:{sh+1}]")
        a(f"v_pk_mul_f32 v[{u}:{u+1}], v[{y}:{y+1}], v[{y}:{y+1}]")
        a(f"v_pk_fma_f32 v[{u}:{u+1}], v[{u}:{u+1}], v[{k2}:{k2+1}], v[{k1}:{k1+1}]")
        a(f"v_pk_mul_f32 v[{u}:{u+1}], v[{u}:{u+1}], v[{y}:{y+1}]")
        a(f"v_exp_f32 v{u}, v{u}\nv_exp_f32 v{u+1}, v{u+1}\ns_nop 0")
        a(f"v_pk_add_f32 v[{u}:{u+1}], v[{u}:{u+1}], v[{one}:{one+1}]")
        a(f"v_rcp_f32 v{u}, v{u}\nv_rcp_f32 v{u+1}, v{u+1}\ns_nop 0")
        a(f"v_pk_mul_f32 v[{u}:{u+1}], v[{u}:{u+1}], v[{y}:{y+1}]")
        a(f"v_cvt_pk_bf16_f32 v{e}, v{u}, v{u+1}\ns_nop 1")
        a(f"v_mov_b32_dpp v{e+1}, v{e} quad_perm:[1,0,3,2] row_mask:0xf bank_mask:0xf")
        a(f"v_perm_b32 v{e}, v{e+1}, v{e}, v{sel}")
        if S % 4 == 0 and S: a(f"s_add_u32 s{sT0}, s{sT0}, 4096")
        a(f"buffer_store_dword v{e}, v{adr}, s[{sO}:{sO+3}], s{sT0} offen offset:{(S&3)*1024}")
    if stamps:
        a("s_waitcnt vmcnt(0)")
        stamp()
        a("s_waitcnt lgkmcnt(0)")
        a(f"s_cmp_lg_u32 s{sWave}, 3\ns_cbranch_scc1 L_end")
        a(f"s_mov_b64 exec, 1\ns_mul_i32 s{sT0}, s2, {nst[0]*16}\ns_add_u32 s{sT0}, s{sT0}, 0x8000000\nv_mov_b32 v{adr}, s{sT0}")
        for i in range(nst[0]):
            for k in range(4): a(f"v_mov_b32 v{vP+k}, s{sSt+4*i+k}")
            a(f"global_store_dwordx4 v{adr}, v[{vP}:{vP+3}], s[{sS}:{sS+1}] offset:{16*i}\ns_nop 1")
    a.label("L_end")
    a("s_endpgm")
    open(out, "w").write(wrap(a.text(), 256, 256, LDS, NV))
    return nst[0]

if __name__ == "__main__":
    gen("v1.s")
    n = gen("v1_st.s", stamps=True)
    print("stamps", n)
```

```python
from asmlib import *
base = open("v1.s").read()
L = "; @launch grid=(256,1,1) block=(256,1,1) lds=151552\n"
K = f"; @launch kernel={NAME} grid=(256,1,1) block=(256,1,1) lds=151552\n"
def kern(name, body, nv=64):
    return f"""
.text
.globl {name}
.p2align 8
.type {name},@function
{name}:
{body}
    s_endpgm
.section .rodata,"a"
.p2align 6
.amdhsa_kernel {name}
  .amdhsa_next_free_vgpr {nv}
  .amdhsa_next_free_sgpr 40
  .amdhsa_accum_offset {nv}
  .amdhsa_group_segment_fixed_size 0
  .amdhsa_kernarg_size 64
  .amdhsa_user_sgpr_count 2
  .amdhsa_user_sgpr_kernarg_segment_ptr 1
  .amdhsa_system_sgpr_workgroup_id_x 1
.end_amdhsa_kernel
"""
data = """
    s_load_dwordx4 s[4:7], s[0:1], 0
    v_lshlrev_b32 v1, 4, v0
    s_lshl_b32 s16, s2, 15
    s_mul_i32 s17, s2, 10240
    s_waitcnt lgkmcnt(0)
    s_mov_b32 s8, s4
    s_mov_b32 s9, s5
    s_mov_b32 s10, 8192000
    s_mov_b32 s11, 0x20000
    s_mov_b32 s12, s6
    s_mov_b32 s13, s7
    s_mov_b32 s14, 2621440
    s_mov_b32 s15, 0x20000
""" + "".join(f"    buffer_load_dwordx4 v[{4+4*i}:{7+4*i}], v1, s[8:11], s16 offen\n    s_add_u32 s16, s16, 4096\n" for i in range(8)) \
    + "".join(f"    buffer_load_dwordx4 v[{36+4*i}:{39+4*i}], v1, s[12:15], s17 offen\n    s_add_u32 s17, s17, 4096\n" for i in range(3))
code = f"""
    s_getpc_b64 s[20:21]
L_pc:
    s_sub_u32 s20, s20, L_pc-{NAME}
    s_subb_u32 s21, s21, 0
    v_lshlrev_b32 v2, 6, v0
    v_min_u32 v2, 13000, v2
    global_load_dword v3, v2, s[20:21]
"""
tlb = """
    s_load_dwordx4 s[24:27], s[0:1], 24
    s_load_dwordx4 s[28:31], s[0:1], 40
    s_load_dwordx2 s[32:33], s[0:1], 56
    v_lshlrev_b32 v48, 2, v0
    s_lshl_b32 s34, s2, 13
    v_add_u32 v49, s34, v48
    v_and_b32 v50, 63, v48
    s_waitcnt lgkmcnt(0)
    global_load_dword v51, v50, s[24:25]
    global_load_dword v52, v50, s[26:27]
    global_load_dword v53, v49, s[28:29]
    v_add_u32 v49, 0x1e0000, v49
    global_load_dword v56, v49, s[28:29]
    global_load_dword v54, v50, s[30:31]
    global_load_dword v55, v48, s[32:33]
"""
guard = "    s_cmp_ge_u32 s2, 256\n    s_cbranch_scc1 L_pfend\n"
w = "    s_waitcnt vmcnt(0)\nL_pfend:\n"
P = "; @launch kernel=pf_kernel grid=(256,1,1) block=(256,1,1) lds=0\n"
open("e_code.s", "w").write(base.replace(L, P + K) + kern("pf_kernel", guard + code + w))
open("e_tlb.s", "w").write(base.replace(L, P + K) + kern("pf_kernel", guard + tlb + w))
open("e_codetlb.s", "w").write(base.replace(L, P + K) + kern("pf_kernel", guard + code + tlb + w))
open("e_all.s", "w").write(base.replace(L, P + K) + kern("pf_kernel", guard + code + data + tlb + w))
open("e_all2.s", "w").write(base.replace(L, P + P + K) + kern("pf_kernel", guard + code + data + tlb + w))
open("e_x3.s", "w").write(base.replace(L, K + K + K))
```
